```python
import torch

def _softmax(x, axis=-1):
    return torch.softmax(x, dim=axis)
def _gelu(x):
    return torch.nn.functional.gelu(x, approximate="tanh")
def _silu(x):
    return torch.nn.functional.silu(x)
def _sigmoid(x):
    return torch.sigmoid(x)
def _layernorm(x, axis=-1, eps=1e-5):
    m = x.mean(dim=axis, keepdim=True)
    v = x.var(dim=axis, keepdim=True, unbiased=False)
    return (x - m) / torch.sqrt(v + eps)
def _scatter_add(tgt, idx, src, axis=0):
    return tgt.clone().index_add_(axis, idx, src)
def _segment_sum(src, seg, n):
    out = torch.zeros((n,) + src.shape[1:], dtype=src.dtype)
    return out.index_add_(0, seg, src)
def _pad(x, pw):
    flat = tuple(v for pair in reversed(pw) for v in pair)
    return torch.nn.functional.pad(x, flat)

kernel_name = 'concat_heads__sliding_local_dilated__spectral_fnet__prompt'

def setup_inputs():

    _w = (lambda a: (lambda t: t.to(torch.bfloat16) if t.is_floating_point() else t)(torch.as_tensor(a)))
    def _A_setup():
        B, S, D = 1, 2048, 448
        return {
            "x": _w((lambda *s: torch.randn(*s, dtype=torch.bfloat16) * 0.2)(B, S, D)),
            "wqkv": _w((lambda *s: torch.randn(*s, dtype=torch.bfloat16) * 0.8)(D, 3 * D)),
            "wo": _w((lambda *s: torch.randn(*s, dtype=torch.bfloat16) * 0.2)(D, D)),
        }
    _A_in = _A_setup()

    def _B_setup():
        B, S, D = 1, 2048, 448
        ns = torch.arange(S)[:, None] * torch.arange(S)[None, :]
        nd = torch.arange(D)[:, None] * torch.arange(D)[None, :]
        Ws_re = torch.cos(-2.0 * torch.pi * ns / S).to(float)
        Ws_im = torch.sin(-2.0 * torch.pi * ns / S).to(float)
        Wd_re = torch.cos(-2.0 * torch.pi * nd / D).to(float)
        Wd_im = torch.sin(-2.0 * torch.pi * nd / D).to(float)
        return {
            "x": _w((lambda *s: torch.randn(*s, dtype=torch.bfloat16) * 0.05)(B, S, D)),
            "dft_seq_re": _w(Ws_re),
            "dft_seq_im": _w(Ws_im),
            "dft_hid_re": _w(Wd_re),
            "dft_hid_im": _w(Wd_im),
        }
    _B_in = _B_setup()

    return {
        "A_x": _A_in["x"],
        "A_wqkv": _A_in["wqkv"],
        "A_wo": _A_in["wo"],
        "B_x": _B_in["x"],
        "B_dft_seq_re": _B_in["dft_seq_re"],
        "B_dft_seq_im": _B_in["dft_seq_im"],
        "B_dft_hid_re": _B_in["dft_hid_re"],
        "B_dft_hid_im": _B_in["dft_hid_im"],
    }

def reference(A_x, A_wqkv, A_wo, B_x, B_dft_seq_re, B_dft_seq_im, B_dft_hid_re, B_dft_hid_im):
    def _A_ref(x, wqkv, wo):
        B, S, D = x.shape
        H = 16; Dh = D // H
        W, dil = 8, 2
        qkv = (lambda x, *d: x.permute(*d))((x @ wqkv).reshape(B, S, 3, H, Dh), 2, 0, 3, 1, 4)
        q, k, v = qkv[0], qkv[1], qkv[2]
        scale = Dh ** -0.5
        pos = torch.arange(S)
        off = torch.arange(W) * dil
        idx = pos[:, None] - off[None, :]
        mask = idx >= 0
        idx_c = torch.where(mask, idx, 0).reshape(-1)
        kg = k[:, :, idx_c, :].reshape(B, H, S, W, Dh)
        vg = v[:, :, idx_c, :].reshape(B, H, S, W, Dh)
        logits = torch.einsum("bhsd,bhswd->bhsw", q, kg) * scale
        logits = torch.where(mask[None, None, :, :], logits, -1e9)
        attn = _softmax(logits, axis=-1)
        o = torch.einsum("bhsw,bhswd->bhsd", attn, vg)
        return (lambda x, *d: x.permute(*d))(o, 0, 2, 1, 3).reshape(B, S, D) @ wo

    def _B_ref(x, dft_seq_re, dft_seq_im, dft_hid_re, dft_hid_im):
        a = torch.einsum("bsd,ed->bse", x, dft_hid_re)
        b = torch.einsum("bsd,ed->bse", x, dft_hid_im)
        y = torch.einsum("ts,bse->bte", dft_seq_re, a) - torch.einsum("ts,bse->bte", dft_seq_im, b)
        return y

    a = _A_ref(A_x, A_wqkv, A_wo)
    b = _B_ref(B_x, B_dft_seq_re, B_dft_seq_im, B_dft_hid_re, B_dft_hid_im)
    return torch.concatenate([a, b], axis=-1)
```

```python
import re

TRANS = ("v_exp_f32", "v_log_f32", "v_rcp_f32", "v_rsq_f32", "v_sqrt_f32", "v_sin_f32", "v_cos_f32", "v_rcp_iflag_f32")
_reg_re = re.compile(r"^(-|\|)?(abs\()?([vas])(\d+|\[(\d+):(\d+)\])\)?\|?$")

def regs_of(op):
    op = op.strip()
    if op in ("vcc", "vcc_lo", "vcc_hi"): return {"vcc"}
    if op in ("exec", "exec_lo", "exec_hi"): return {"exec"}
    if op == "m0": return {"m0"}
    m = _reg_re.match(op)
    if not m: return set()
    k = m.group(3)
    if m.group(5) is not None:
        return {k + str(i) for i in range(int(m.group(5)), int(m.group(6)) + 1)}
    return {k + m.group(4)}

class Ins:
    def __init__(self, text):
        self.text = text
        t = text.split(";")[0].strip()
        self.label = t[:-1] if t.endswith(":") else None
        self.op = None; self.kind = None
        self.defs = set(); self.uses = set(); self.A = self.B = self.C = self.D = set()
        self.states = 0; self.target = None; self.passes = 0; self.sdata = set()
        if self.label is not None or not t or t.startswith("."):
            return
        parts = t.split(None, 1)
        op = parts[0]; rest = parts[1] if len(parts) > 1 else ""
        op = re.sub(r"_(e32|e64)$", "", op)
        self.op = op
        ops = [o.strip() for o in rest.split(",")] if rest else []
        mods = ""
        if ops:
            joined = rest
            m = re.search(r"\s(offen|offset|lds|sc0|sc1|nt|neg_lo|neg_hi|op_sel|row_|quad_perm|dst_sel|src0_sel|bitop3|clamp|mul:|div:|glc|cbsz|abid|blgp)", joined)
            if m: mods = joined[m.start():]; joined = joined[:m.start()]
            ops = [o.strip() for o in joined.split(",")]
        self.mods = mods
        R = [regs_of(o) for o in ops]
        U = lambda lst: set().union(*lst) if lst else set()
        self.states = 1
        if op == "s_nop":
            self.kind = "nop"; self.states = int(ops[0], 0) + 1
        elif op.startswith("s_cbranch") or op == "s_branch":
            self.kind = "branch"; self.target = ops[0]
        elif op in ("s_waitcnt", "s_barrier", "s_endpgm", "s_sleep", "s_setprio"):
            self.kind = "misc"
        elif op.startswith("s_load") or op.startswith("s_buffer_load") or op in ("s_memtime", "s_memrealtime"):
            self.kind = "smem"; self.defs = R[0]; self.uses = U(R[1:])
        elif op.startswith("s_cmp") or op.startswith("s_bitcmp"):
            self.kind = "salu"; self.uses = U(R)
        elif op.startswith("s_"):
            self.kind = "salu"; self.defs = set(R[0]); self.uses = U(R[1:])
            if "saveexec" in op: self.defs |= {"exec"}
        elif op.startswith("v_mfma"):
            self.kind = "mfma"; self.D, self.A, self.B, self.C = R[0], R[1], R[2], R[3]
            self.defs = R[0]; self.uses = U(R[1:])
            self.passes = 8 if "32x32" in op else 4
        elif op.startswith("v_"):
            self.kind = "valu"
            if "permlane" in op and "swap" in op:
                self.defs = U(R); self.uses = U(R)
            elif op.startswith(("v_add_co", "v_sub_co", "v_addc_co", "v_subb_co", "v_subrev_co", "v_mad_u64", "v_div_scale")):
                self.defs = R[0] | R[1]; self.uses = U(R[2:])
            else:
                self.defs = set(R[0]); self.uses = U(R[1:])
                if op.startswith(("v_fmac", "v_dot2c", "v_pk_fmac")) or "_dpp" in op or "d16" in op: self.uses |= R[0]
                if op.startswith("v_cmpx"): self.defs |= {"exec"}
                if op.startswith("v_cndmask") and len(ops) == 3: self.uses |= {"vcc"}
        elif op.startswith(("buffer_", "global_")):
            self.kind = "vmem"
            lds = " lds" in mods or "_lds_" in op
            if op in ("buffer_wbl2", "buffer_inv"): pass
            elif "load" in op and not lds:
                self.defs = set(R[0]); self.uses = U(R[1:])
                if "d16" in op: self.uses |= R[0]
            else:
                self.uses = U(R)
                if lds: self.uses |= {"m0"}
                if "store" in op and ("x3" in op or "x4" in op):
                    self.sdata = R[0] if op.startswith("buffer_") else R[1]
                if "atomic" in op and "sc0" in mods: self.defs = set(R[0])
            self.lds = lds
        elif op.startswith("ds_"):
            self.kind = "ds"
            if op.startswith(("ds_read", "ds_bpermute", "ds_permute", "ds_swizzle")):
                self.defs = set(R[0]); self.uses = U(R[1:])
            else:
                self.uses = U(R)
        else:
            raise ValueError("unknown instruction: " + text)

def isv(rs): return {r for r in rs if r[0] in "va" and r not in ("vcc",)}
def iss(rs): return {r for r in rs if r[0] == "s" or r == "vcc"}

def need(p, c):
    n = 0
    if p.kind == "valu":
        pv = isv(p.defs); ps = iss(p.defs)
        if c.kind == "mfma" and pv & c.uses: n = max(n, 2)
        if c.kind == "valu":
            if pv & c.uses:
                if p.op in TRANS: n = max(n, 1)
                if "permlane" in c.op or "_dpp" in c.op: n = max(n, 2)
                if c.op.startswith(("v_readfirstlane", "v_readlane")): n = max(n, 1)
                if "sdwa" in p.op or "op_sel" in p.mods: n = max(n, 1)
            if ps & c.uses:
                n = max(n, 4 if c.op.startswith(("v_readlane", "v_writelane")) else 2)
            if "exec" in p.defs: n = max(n, 5)
        if c.kind == "mfma" and "exec" in p.defs: n = max(n, 4)
        if c.kind == "vmem" and ps & c.uses: n = max(n, 5)
        if c.kind in ("salu", "smem") and ps & c.uses: n = max(n, 1)
    elif p.kind == "mfma":
        big = {4: 8, 8: 12}[p.passes]
        if c.kind == "mfma":
            if p.D & (c.A | c.B): n = max(n, big)
            if p.D & c.C and not (p.D == c.C and p.passes == c.passes): n = max(n, big - 2)
            if p.D & c.D and not (p.D == c.C): n = max(n, big - 2)
        elif c.kind in ("valu", "vmem", "ds"):
            if p.D & (c.uses | c.defs): n = max(n, big)
            if c.kind == "valu" and p.C & c.defs: n = max(n, p.passes - 1)
    elif p.kind == "salu":
        if "m0" in p.defs and c.kind == "vmem" and "m0" in c.uses: n = max(n, 1)
    elif p.kind == "vmem":
        if p.sdata & c.defs: n = max(n, 2)
    return n

def fix_hazards(lines, verbose=False):
    ins = [Ins(l) for l in lines]
    total = 0
    while True:
        labels = {x.label: i for i, x in enumerate(ins) if x.label}
        srcs = {}
        for i, x in enumerate(ins):
            if x.kind == "branch": srcs.setdefault(labels[x.target], []).append(i)
        def preds(i):
            out = []
            if i > 0:
                q = ins[i - 1]
                if not (q.op in ("s_branch", "s_endpgm")): out.append(i - 1)
            if ins[i].label: out += srcs.get(i, [])
            return out
        changed = False
        for i, c in enumerate(ins):
            if c.op is None or c.kind in ("nop", "misc", "branch"): continue
            deficit = 0
            stack = [(p, 0) for p in preds(i)]
            seen = {}
            while stack:
                j, d = stack.pop()
                if d >= 12 or seen.get(j, 99) <= d: continue
                seen[j] = d
                p = ins[j]
                if p.op is not None:
                    deficit = max(deficit, need(p, c) - d)
                for q in preds(j): stack.append((q, d + p.states))
            if deficit > 0:
                if verbose: print("nop %d before: %s" % (deficit, c.text.strip()))
                ins.insert(i, Ins("    s_nop %d" % (deficit - 1)))
                total += deficit
                changed = True
                break
        if not changed: break
    return [x.text for x in ins], total

class Asm:
    def __init__(self):
        self.lines = []
    def __call__(self, s=""):
        for l in s.split("\n"):
            l = l.strip()
            if not l: continue
            self.lines.append(l if l.endswith(":") else "    " + l)
    def raw(self, s):
        self.lines.append(s)
    def text(self, fix=False, verbose=False):
        if not fix: return "\n".join(self.lines) + "\n"
        out = []; cur = []
        code = [l for l in self.lines]
        idx = next((i for i, l in enumerate(code) if l.startswith(".section .rodata")), len(code))
        head = [l for l in code[:idx]]
        keep = [(l if not l.lstrip().startswith(";") else "") for l in head]
        first = next(i for i, l in enumerate(head) if l.startswith(".text"))
        fixed, n = fix_hazards(head[first:], verbose)
        self.nops = n
        return "\n".join(head[:first] + fixed + code[idx:]) + "\n"

def interleave(major, minor, start=0, every=1):
    out = []; mi = 0
    n = len(major)
    for i, x in enumerate(major):
        out.append(x)
        if i >= start:
            want = (i - start + 1) * len(minor) // max(1, (n - start)) if every == 0 else min(len(minor), (i - start + 1) * every)
            while mi < want:
                out.append(minor[mi]); mi += 1
    out += minor[mi:]
    return out

def kernel_header(a, name):
    a.raw(".text")
    a.raw(".globl %s" % name)
    a.raw(".p2align 8")
    a.raw(".type %s,@function" % name)
    a.raw("%s:" % name)

def kernel_desc(a, name, vgpr, sgpr, accum):
    a.raw(".p2align 6")
    a.raw(".amdhsa_kernel %s" % name)
    a.raw("  .amdhsa_next_free_vgpr %d" % vgpr)
    a.raw("  .amdhsa_next_free_sgpr %d" % sgpr)
    a.raw("  .amdhsa_accum_offset %d" % accum)
    a.raw("  .amdhsa_group_segment_fixed_size 0")
    a.raw("  .amdhsa_kernarg_size 88")
    a.raw("  .amdhsa_user_sgpr_count 2")
    a.raw("  .amdhsa_user_sgpr_kernarg_segment_ptr 1")
    a.raw("  .amdhsa_system_sgpr_workgroup_id_x 1")
    a.raw("  .amdhsa_float_denorm_mode_32 3")
    a.raw(".end_amdhsa_kernel")

def srd(a, d, base, nbytes):
    a("s_mov_b32 s%d, s%d" % (d, base))
    a("s_and_b32 s%d, s%d, 0xffff" % (d + 1, base + 1))
    a("s_mov_b32 s%d, 0x%x" % (d + 2, nbytes))
    a("s_mov_b32 s%d, 0x20000" % (d + 3))
```

```python
import sys, math, struct
sys.path.insert(0, "tools")
from asmlib import *

STAMP = "stamp" in sys.argv
OUT = sys.argv[1]
HDR = open("concat_heads__sliding_local_dilated__spectral_fnet__prompt.s.ref").read().split("; Override launch")[0]

def f32(x): return "0x%08x" % struct.unpack("<I", struct.pack("<f", x))[0]
def vr(b, n=4): return "v[%d:%d]" % (b, b + n - 1)
def ar(b, n=4): return "a[%d:%d]" % (b, b + n - 1)
MF = "v_mfma_f32_16x16x32_bf16"
OOB = 0x40000000
WS_O = 0
WS_G = 2 << 20
WS_STAMP = 8 << 20
WS_SIZE = 16 << 20
SLOT = 36864

a = Asm()
for l in HDR.strip().split("\n"): a.raw(l)
a.raw("; @launch kernel=fa_p1_kernel grid=(256,1,1) block=(256,1,1) lds=%d" % (4 * SLOT))
a.raw("; @launch kernel=fa_p2_kernel grid=(256,1,1) block=(256,1,1) lds=%d" % (57 * 1024 + 8192))
a.raw('.amdgcn_target "amdgcn-amd-amdhsa--gfx950"')

nstamp = [0]
def stamp():
    if STAMP:
        a("s_memtime s[%d:%d]" % (70 + 2 * nstamp[0], 71 + 2 * nstamp[0])); nstamp[0] += 1
def stamp_begin():
    nstamp[0] = 0
    if STAMP:
        a("s_memrealtime s[66:67]")
        stamp()
def stamp_end(kn, ws):
    if not STAMP: return
    a("s_waitcnt vmcnt(0)")
    stamp()
    a("s_memrealtime s[68:69]")
    a("s_waitcnt lgkmcnt(0)")
    a("s_lshl_b32 s64, s2, 2")
    a("s_add_u32 s64, s64, s3")
    a("s_lshl_b32 s64, s64, 6")
    a("s_add_u32 s64, s64, %d" % (WS_STAMP + kn * 65536))
    regs = [66, 68] + [70 + 2 * i for i in range(14)]
    for i, r in enumerate(regs): a("v_mov_b32 v%d, s%d" % (32 + i, r))
    a("v_mov_b32 v48, s64")
    a("s_mov_b64 exec, 1")
    for i in range(4): a("buffer_store_dwordx4 %s, v48, s[%d:%d], 0 offen offset:%d" % (vr(32 + 4 * i), ws, ws + 3, 16 * i))

kernel_header(a, "fa_p1_kernel")
stamp_begin()
a("s_cmp_ge_u32 s2, 256")
a("s_cbranch_scc1 L1_end")
a("s_load_dwordx4 s[4:7], s[0:1], 0")
a("s_load_dwordx2 s[8:9], s[0:1], 24")
a("s_load_dwordx2 s[10:11], s[0:1], 80")
a("v_lshrrev_b32 v2, 6, v0")
a("v_and_b32 v1, 63, v0")
a("v_readfirstlane_b32 s3, v2")
a("s_and_b32 s24, s2, 7")
a("s_lshr_b32 s25, s2, 3")
a("s_cmp_ge_u32 s25, 24")
a("s_cbranch_scc1 L1_B")

SX, SW, SWS = 12, 16, 20
sH, sP, sT0, sBlk, sC, sMX, sMW, sKX, sKW = 26, 27, 28, 29, 30, 31, 32, 33, 34
a("s_lshr_b32 s35, s24, 1")
a("s_mul_i32 s35, s35, 3")
a("s_lshr_b32 s36, s25, 3")
a("s_add_u32 s35, s35, s36")
a("s_and_b32 s%d, s35, 1" % sP)
a("s_lshr_b32 s%d, s35, 1" % sBlk)
a("s_and_b32 s37, s24, 1")
a("s_lshl_b32 s37, s37, 3")
a("s_and_b32 s38, s25, 7")
a("s_add_u32 s%d, s37, s38" % sH)
a("s_mul_i32 s36, s36, 3")
a("s_add_u32 s36, s36, s38")
a("s_cmp_ge_u32 s36, 7")
a("s_cselect_b32 s37, 7, 0")
a("s_sub_u32 s%d, s36, s37" % sC)
a("s_mul_i32 s%d, s%d, 11" % (sT0, sBlk))
a("s_cmp_eq_u32 s%d, 5" % sBlk)
a("s_cselect_b32 s37, 1, 0")
a("s_sub_u32 s%d, s%d, s37" % (sT0, sT0))
vX, vW = 2, 8
a("s_mul_i32 s36, s3, 3")
a("s_add_u32 s36, s36, s%d" % sT0)
a("s_lshl_b32 s37, s36, 5")
a("s_add_u32 s37, s37, s%d" % sP)
a("s_sub_u32 s37, s37, 32")
a("s_mul_i32 s37, s37, 896")
a("v_lshrrev_b32 v32, 3, v1")
a("v_mul_u32_u24 v32, 1792, v32")
a("v_and_b32 v33, 7, v1")
a("v_lshrrev_b32 v34, 4, v1")
a("v_xor_b32 v33, v33, v34")
a("v_lshl_add_u32 v32, v33, 4, v32")
a("v_xor_b32 v33, 64, v32")
for b in range(6):
    a("s_add_u32 s38, s37, %d" % (b * 16 * 896))
    if b == 0:
        a("s_cmp_eq_u32 s3, 0")
        a("s_cselect_b32 s38, 0x%x, s38" % OOB)
    if b == 1:
        a("s_cmp_eq_u32 s36, 0")
        a("s_cselect_b32 s38, 0x%x, s38" % OOB)
    if b == 4:
        a("s_lshr_b32 s39, s%d, 2" % sBlk)
        a("s_add_u32 s39, s39, s3")
    if b >= 4:
        a("s_cmp_eq_u32 s39, 4")
        a("s_cselect_b32 s38, 0x%x, s38" % OOB)
    a("v_add_u32 v%d, s38, v%d" % (vX + b, 32 + (b & 1)))
a("v_lshrrev_b32 v32, 5, v1")
a("v_bfe_u32 v33, v1, 4, 1")
a("v_bfe_u32 v35, v1, 2, 2")
a("v_lshl_add_u32 v36, v32, 2, v35")
a("v_lshl_add_u32 v36, v33, 3, v36")
a("v_mul_u32_u24 v36, 2688, v36")
a("v_lshlrev_b32 v37, 1, v33")
a("v_xor_b32 v37, v37, v1")
a("v_and_b32 v37, 3, v37")
a("v_lshlrev_b32 v37, 4, v37")
a("v_min_u32 v37, 40, v37")
a("s_mul_i32 s38, s3, 16*2688")
a("s_mul_i32 s40, s%d, 56" % sH)
a("s_add_u32 s38, s38, s40")
a("v_add3_u32 v%d, v36, v37, s38" % vW)
a("s_mul_i32 s%d, s3, 6144" % sMX)
a("s_add_u32 s%d, s%d, 12288" % (sMX, sMX))
a("s_mul_i32 s%d, s3, 3072" % sMW)
a("s_waitcnt lgkmcnt(0)")
srd(a, SX, 4, 2048 * 896)
srd(a, SW, 6, 448 * 2688)
srd(a, SWS, 10, WS_SIZE)
stamp()

def dma_chunk(i):
    so = (i % 4) * SLOT
    g = []
    g.append(["s_lshl_b32 s%d, s%d, 7" % (sKX, sC), "s_mul_i32 s%d, s%d, 64*2688" % (sKW, sC),
              "s_add_u32 s%d, s%d, 1" % (sC, sC), "s_cmp_eq_u32 s%d, 7" % sC, "s_cselect_b32 s%d, 0, s%d" % (sC, sC)])
    order = [("w", 0), ("x", 0), ("x", 1), ("w", 1), ("x", 2), ("x", 3), ("w", 2), ("x", 4), ("x", 5)]
    for kind, n in order:
        if kind == "w":
            g.append(["s_add_u32 m0, s%d, %d" % (sMW, so + 128 * n), "s_nop 0",
                      "buffer_load_dwordx4 v%d, s[%d:%d], s%d offen offset:%d lds" % (vW, SW, SW + 3, sKW, 896 * n)])
        else:
            g.append(["s_add_u32 m0, s%d, %d" % (sMX, so + 1024 * n), "s_nop 0",
                      "buffer_load_dwordx4 v%d, s[%d:%d], s%d offen lds" % (vX + n, SX, SX + 3, sKX)])
    return g
for i in range(3):
    for grp in dma_chunk(i):
        for l in grp: a(l)
stamp()
vWb, vXb, vA = 9, 11, 13
a("v_mul_u32_u24 v36, 3072, v32")
a("v_lshl_add_u32 v36, v33, 8, v36")
a("v_lshl_add_u32 v36, v35, 6, v36")
a("v_lshl_add_u32 v36, v33, 5, v36")
a("v_and_b32 v37, 3, v1")
a("v_lshl_add_u32 v%d, v37, 3, v36" % vWb)
a("v_lshrrev_b32 v38, 1, v37")
a("v_xor_b32 v37, v37, v38")
a("v_xor_b32 v36, 32, v36")
a("v_lshl_add_u32 v%d, v37, 3, v36" % (vWb + 1))
a("v_and_b32 v36, 15, v1")
a("v_lshrrev_b32 v37, 1, v36")
a("v_xor_b32 v37, v37, v34")
a("v_lshlrev_b32 v37, 4, v37")
a("v_lshl_add_u32 v37, v36, 7, v37")
a("v_add_u32 v%d, s%d, v37" % (vXb, sMX))
a("v_xor_b32 v%d, 64, v%d" % (vXb + 1, vXb))
vM0, vM1, vPM, vZ, vO, vMF = 20, 24, 28, 30, 31, 56
a("v_lshlrev_b32 v37, 2, v34")
a("v_sub_u32 v37, v36, v37")
a("v_mov_b32 v39, 0xff800000")
for r in range(4):
    a("v_subrev_u32 v38, %d, v37" % r)
    a("v_cmp_gt_u32 vcc, 8, v38")
    a("v_cndmask_b32 v%d, v39, 0, vcc" % (vM1 + r))
    a("v_cmp_ge_i32 vcc, -9, v38")
    a("v_cndmask_b32 v%d, v39, 0, vcc" % (vM0 + r))
    a("v_cmp_le_i32 vcc, 0, v38")
    a("v_cndmask_b32 v%d, 0, -1, vcc" % (40 + r))
a("v_mov_b32 v38, 0xffff")
a("v_bfi_b32 v%d, v38, v40, v41" % vPM)
a("v_bfi_b32 v%d, v38, v42, v43" % (vPM + 1))
a("v_cmp_ne_u32 vcc, 3, v34")
a("v_cndmask_b32 v%d, 0, -1, vcc" % vZ)
a("s_cmp_eq_u32 s36, 0")
a("s_cselect_b32 s38, 0xff800000, 0")
for r in range(4): a("v_or_b32 v%d, s38, v%d" % (vMF + r, vM0 + r))
a("s_lshl_b32 s38, s%d, 6" % sP)
a("s_add_u32 s38, s38, s36")
a("s_lshl_b32 s38, s38, 4")
a("s_add_u32 s38, s38, s%d" % sH)
a("s_lshl_b32 s38, s38, 10")
a("v_lshl_add_u32 v%d, v1, 4, s38" % vO)

ACC, XF, WF = 64, 136, 160
def acc(t, n): return ACC + (t * 6 + n) * 4
def reads(ks):
    L = []
    for n in range(6):
        s, c = n >> 1, n & 1
        if n < 3: L.append("ds_read_b128 %s, v%d offset:%d" % (vr(XF + ks * 12 + n * 4), vA + 2 + ks, n * 2048))
        for r in range(2):
            L.append("ds_read_b64_tr_b16 %s, v%d offset:%d" % (vr(WF + ks * 24 + n * 4 + 2 * r, 2), vA + c, ks * 6144 + s * 1024 + r * 512))
    return L
def mfmas(ks, first, order=None):
    L = []
    for n, t in (order or [(n, t) for n in range(6) for t in range(3)]):
        x, w = vr(XF + ks * 12 + t * 4), vr(WF + ks * 24 + n * 4)
        A_, B_ = (w, x) if n < 4 else (x, w)
        L.append("%s %s, %s, %s, %s" % (MF, vr(acc(t, n)), A_, B_, "0" if first else vr(acc(t, n))))
    return L
for i in range(7):
    a("s_waitcnt vmcnt(%d) lgkmcnt(0)" % (18 if i <= 4 else 9 * (6 - i)))
    a("s_barrier")
    if i in (0, 3, 6): stamp()
    so = (i % 4) * SLOT
    for k in range(2):
        a("v_add_u32 v%d, %d, v%d" % (vA + k, so, vWb + k))
        a("v_add_u32 v%d, %d, v%d" % (vA + 2 + k, so, vXb + k))
    dm = dma_chunk(i + 3) if i + 3 < 7 else []
    d1, d2 = dm[:5], dm[5:]
    def mix(mf, rd, dg):
        out = []; ri = 0; di = 0
        if not mf:
            return rd + [l for g in dg for l in g]
        for k, m in enumerate(mf):
            for _ in range(2):
                if ri < len(rd): out.append(rd[ri]); ri += 1
            out.append(m)
            if k >= 7 and (k - 7) % 2 == 0 and di < len(dg): out += dg[di]; di += 1
        for g in dg[di:]: out += g
        return out
    for l in mix(mfmas(1, False) if i > 0 else [], reads(0), d1): a(l)
    a("s_waitcnt lgkmcnt(0)")
    for l in mix(mfmas(0, i == 0), reads(1), d2): a(l)
a("s_waitcnt lgkmcnt(0)")
last = [(n, 2) for n in (2, 3, 4, 5, 0, 1)] + [(n, 1) for n in range(6)] + [(n, 0) for n in range(6)]
ml = mfmas(1, False, last)
KF = 208
VF = 224
QF = 240
def packK(t): return ["v_cvt_pk_bf16_f32 v%d, v%d, v%d" % (KF + 4 * (t + 1) + i, acc(t, 2) + 2 * i, acc(t, 2) + 2 * i + 1) for i in range(4)]
def packV(t): return ["v_cvt_pk_bf16_f32 v%d, v%d, v%d" % (VF + 8 * (i >> 1) + 2 * (t + 1) + (i & 1), acc(t, 4) + 2 * i, acc(t, 4) + 2 * i + 1) for i in range(4)]
def packQ(t): return ["v_cvt_pk_bf16_f32 v%d, v%d, v%d" % (QF + 4 * t + i, acc(t, 0) + 2 * i, acc(t, 0) + 2 * i + 1) for i in range(4)] + \
                     ["v_and_b32 v%d, v%d, v%d" % (QF + 4 * t + i, vZ, QF + 4 * t + i) for i in (2, 3)]
a("s_lshl_b32 s38, s3, 11")
a("v_lshl_add_u32 v32, v1, 4, s38")
for l in ml[:12]: a(l)
for l in interleave(ml[12:], packK(2) + packV(2), 0, 2): a(l)
a("ds_write_b128 v32, %s offset:2048" % vr(KF + 12))
a("ds_write_b64 v32, %s offset:3072" % vr(VF + 6, 2))
a("ds_write_b64 v32, %s offset:3080" % vr(VF + 14, 2))
for l in packQ(2) + packK(1) + packV(1) + packQ(1): a(l)
a("s_waitcnt lgkmcnt(0)")
a("s_barrier")
a("ds_read_b128 %s, v32" % vr(KF))
a("ds_read_b64 %s, v32 offset:1024" % vr(VF, 2))
a("ds_read_b64 %s, v32 offset:1032" % vr(VF + 8, 2))
for l in packK(0) + packV(0) + packQ(0): a(l)
stamp()
S = 64
CS = (28 ** -0.5) * math.log2(math.e)
a("s_mov_b32 s38, %s" % f32(CS))
def s0(t): return S + 8 * t
def s1(t): return S + 8 * t + 4
for t in (2, 1):
    a("%s %s, %s, %s, %s" % (MF, vr(s0(t)), vr(KF + 4 * t), vr(QF + 4 * t), vr(vMF if t == 1 else vM0)))
    a("%s %s, %s, %s, %s" % (MF, vr(s1(t)), vr(KF + 4 * t + 4), vr(QF + 4 * t), vr(vM1)))
a("%s %s, %s, %s, %s" % (MF, vr(s1(0)), vr(KF + 4), vr(QF), vr(vM1)))
a("s_waitcnt lgkmcnt(0)")
a("%s %s, %s, %s, %s" % (MF, vr(s0(0)), vr(KF), vr(QF), vr(vM0)))
T3 = (2, 1, 0)
mx, tp, sm = 96, 100, 104
for t in T3:
    for r in range(4): a("v_max_f32 v%d, v%d, v%d" % (s0(t) + r, s0(t) + r, s1(t) + r))
for t in T3: a("v_max3_f32 v%d, v%d, v%d, v%d" % (mx + t, s0(t), s0(t) + 1, s0(t) + 2))
for t in T3: a("v_max_f32 v%d, v%d, v%d" % (mx + t, mx + t, s0(t) + 3))
def xlane(reg, op):
    for sw in ("v_permlane32_swap_b32", "v_permlane16_swap_b32"):
        for t in T3: a("v_mov_b32 v%d, v%d" % (tp + t, reg + t))
        for t in T3: a("%s v%d, v%d" % (sw, reg + t, tp + t))
        for t in T3: a("%s v%d, v%d, v%d" % (op, reg + t, reg + t, tp + t))
xlane(mx, "v_max_f32")
for t in T3: a("v_mul_f32 v%d, s38, v%d" % (mx + t, mx + t))
for t in T3:
    for r in range(4): a("v_fma_f32 v%d, v%d, s38, -v%d" % (s0(t) + r, s0(t) + r, mx + t))
for t in T3:
    for r in range(4): a("v_exp_f32 v%d, v%d" % (s0(t) + r, s0(t) + r))
for t in T3: a("v_add_f32 v%d, v%d, v%d" % (sm + t, s0(t), s0(t) + 1))
for t in T3: a("v_add_f32 v%d, v%d, v%d" % (tp + t, s0(t) + 2, s0(t) + 3))
for t in T3: a("v_add_f32 v%d, v%d, v%d" % (sm + t, sm + t, tp + t))
xlane(sm, "v_add_f32")
for t in T3: a("v_rcp_f32 v%d, v%d" % (sm + t, sm + t))
for t in T3:
    for r in range(4): a("v_mul_f32 v%d, v%d, v%d" % (s0(t) + r, s0(t) + r, sm + t))
PF, OA, OP = 108, 136, 160
for t in T3:
    for i in range(2): a("v_cvt_pk_bf16_f32 v%d, v%d, v%d" % (s1(t) + i, s0(t) + 2 * i, s0(t) + 2 * i + 1))
for t in T3:
    for i in range(2):
        a("v_bfi_b32 v%d, v%d, 0, v%d" % (PF + 4 * t + i, vPM + i, s1(t) + i))
        a("v_and_b32 v%d, v%d, v%d" % (PF + 4 * t + 2 + i, vPM + i, s1(t) + i))
for t in T3:
    for n in range(2):
        a("%s %s, %s, %s, 0" % (MF, vr(OA + 8 * t + 4 * n), vr(VF + 8 * n + 2 * t), vr(PF + 4 * t)))
a("s_cmp_eq_u32 s3, 0")
a("s_cselect_b32 s40, 0x%x, 0" % OOB)
a("s_cmp_eq_u32 s39, 4")
a("s_cselect_b32 s41, 0x%x, %d" % (OOB, 0))
a("s_add_u32 s41, s41, 16384")
a("v_subrev_u32 v33, 16384, v%d" % vO)
a("v_or_b32 v33, s40, v33")
a("v_and_b32 v33, 0x7fffffff, v33")
for t in T3:
    for i in range(4): a("v_cvt_pk_bf16_f32 v%d, v%d, v%d" % (OP + 4 * t + i, OA + 8 * t + 2 * i, OA + 8 * t + 2 * i + 1))
    for i in (2, 3): a("v_and_b32 v%d, v%d, v%d" % (OP + 4 * t + i, vZ, OP + 4 * t + i))
    a("buffer_store_dwordx4 %s, v%d, s[%d:%d], %s offen" % (vr(OP + 4 * t), 33 if t == 0 else vO, SWS, SWS + 3, "s41" if t == 2 else "0"))
stamp()
stamp_end(0, SWS)
a("s_endpgm")

a("L1_B:")
nstamp[0] = 1
sS2 = 26
a("s_lshl_b32 s%d, s24, 3" % sS2)
a("s_add_u32 s%d, s%d, s25" % (sS2, sS2))
a("s_sub_u32 s%d, s%d, 24" % (sS2, sS2))
a("v_lshrrev_b32 v2, 5, v1")
a("v_and_b32 v3, 31, v1")
a("s_lshl_b32 s27, s3, 9")
a("s_add_u32 s27, s27, s%d" % sS2)
a("s_mul_i32 s27, s27, 896")
a("v_mul_u32_u24 v4, 64*896, v2")
a("v_add_u32 v4, s27, v4")
a("v_cmp_gt_u32 vcc, 28, v3")
a("v_mov_b32 v8, 0x%x" % OOB)
a("v_cndmask_b32 v4, v8, v4, vcc")
a("v_lshlrev_b32 v5, 4, v3")
a("v_sub_u32 v6, v4, v5")
a("v_add_u32 v6, 880, v6")
a("v_add_u32 v5, v4, v5")
a("v_add_u32 v7, 16, v6")
a("v_cmp_ne_u32 vcc, 0, v3")
a("v_cndmask_b32 v7, v8, v7, vcc")
a("v_lshrrev_b32 v9, 4, v1")
a("v_and_b32 v10, 15, v1")
a("s_mul_i32 s28, s%d, 896" % sS2)
a("s_add_u32 s28, s28, 448")
a("v_mul_u32_u24 v11, 256*896, v9")
a("v_add_u32 v11, s28, v11")
a("s_waitcnt lgkmcnt(0)")
SB = 12
srd(a, SB, 8, 2048 * 896)
srd(a, SWS, 10, WS_SIZE)
stamp()
FW, MI, EX, CI = 64, 80, 96, 100
for i in range(4):
    a("s_mov_b32 s29, %d" % (i * 128 * 896))
    a("buffer_load_dwordx4 %s, v5, s[%d:%d], s29 offen" % (vr(FW + 4 * i), SB, SB + 3))
    a("buffer_load_dwordx4 %s, v6, s[%d:%d], s29 offen" % (vr(MI + 4 * i), SB, SB + 3))
    a("buffer_load_ushort v%d, v7, s[%d:%d], s29 offen" % (EX + i, SB, SB + 3))
for i in range(8):
    a("s_mov_b32 s29, %d" % (((i >> 2) * 16 + (i & 3)) * 64 * 896))
    a("buffer_load_ushort v%d, v11, s[%d:%d], s29 offen" % (CI + i, SB, SB + 3))
TC, TS, TN = 112, 120, 128
a("v_lshlrev_b32 v12, 8, v9")
a("v_add_u32 v12, s%d, v12" % sS2)
a("v_cvt_f32_u32 v12, v12")
a("v_cvt_f32_u32 v13, v10")
a("v_mul_f32 v13, %s, v13" % f32(1.0 / 2048))
for tt in range(2):
    if tt: a("v_add_f32 v13, %s, v13" % f32(16.0 / 2048))
    for j in range(8):
        a("v_add_f32 v%d, %s, v12" % (32 + j, f32(64.0 * ((j & 3) + 16 * (j >> 2)))))
    for j in range(8): a("v_mul_f32 v%d, v%d, v13" % (32 + j, 32 + j))
    for j in range(8): a("v_cos_f32 v%d, v%d" % (40 + j, 32 + j))
    for j in range(8): a("v_sin_f32 v%d, v%d" % (48 + j, 32 + j))
    for i in range(4):
        a("v_cvt_pk_bf16_f32 v%d, v%d, v%d" % (TC + 4 * tt + i, 40 + 2 * i, 41 + 2 * i))
        a("v_cvt_pk_bf16_f32 v%d, v%d, v%d" % (TS + 4 * tt + i, 48 + 2 * i, 49 + 2 * i))
        a("v_cvt_pk_bf16_f32 v%d, -v%d, -v%d" % (TN + 4 * tt + i, 48 + 2 * i, 49 + 2 * i))
a("s_lshr_b32 s29, s3, 1")
a("s_mul_i32 s29, s29, 7168")
a("s_and_b32 s30, s3, 1")
a("s_lshl_b32 s30, s30, 3")
a("v_add_u32 v14, s30, v2")
a("v_and_b32 v15, 7, v3")
a("v_xor_b32 v14, v14, v15")
a("v_lshlrev_b32 v14, 4, v14")
a("v_lshl_add_u32 v14, v3, 8, v14")
a("v_add_u32 v14, s29, v14")
a("v_xor_b32 v15, v10, v9")
a("v_lshlrev_b32 v15, 4, v15")
a("v_lshl_add_u32 v15, v9, 8, v15")
a("v_xor_b32 v16, 64, v15")
a("v_cmp_gt_u32 s[30:31], 28, v3")
a("v_mov_b32 v17, 0xffff0000")
stamp()
for i in range(4):
    a("s_waitcnt vmcnt(%d)" % (8 + 3 * (3 - i)))
    f, m, e = FW + 4 * i, MI + 4 * i, EX + i
    for j in range(8):
        a(("v_lshlrev_b32 v%d, 16, v%d" if j % 2 == 0 else "v_and_b32 v%d, v17, v%d") % (32 + j, f + j // 2))
    a("v_lshlrev_b32 v40, 16, v%d" % e)
    for j in range(1, 8):
        el = 8 - j
        a(("v_lshlrev_b32 v%d, 16, v%d" if el % 2 == 0 else "v_and_b32 v%d, v17, v%d") % (40 + j, m + el // 2))
    for j in range(0, 8, 2):
        a("v_pk_add_f32 %s, %s, %s" % (vr(48 + j, 2), vr(32 + j, 2), vr(40 + j, 2)))
        a("v_pk_add_f32 %s, %s, %s neg_lo:[0,1] neg_hi:[0,1]" % (vr(56 + j, 2), vr(32 + j, 2), vr(40 + j, 2)))
    for j in range(4):
        a("v_cvt_pk_bf16_f32 v%d, v%d, v%d" % (f + j, 48 + 2 * j, 49 + 2 * j))
        a("v_cvt_pk_bf16_f32 v%d, v%d, v%d" % (m + j, 56 + 2 * j, 57 + 2 * j))
    if i: a("v_xor_b32 v18, %d, v14" % (32 * i))
    a("s_mov_b64 exec, s[30:31]")
    a("ds_write_b128 v%d, %s" % (18 if i else 14, vr(f)))
    a("ds_write_b128 v%d, %s offset:14336" % (18 if i else 14, vr(m)))
    a("s_mov_b64 exec, -1")
a("s_waitcnt vmcnt(0) lgkmcnt(0)")
a("s_barrier")
stamp()
for part in range(2):
    for rt in range(2):
        for ks in range(7):
            a("ds_read_b128 %s, v%d offset:%d" % (ar(((part * 2 + rt) * 7 + ks) * 4), 15 + (ks & 1), part * 14336 + rt * 7168 + ks * 1024))
a("v_and_b32 v32, 1, v10")
a("v_xor_b32 v32, 1, v32")
a("v_lshlrev_b32 v32, 31, v32")
for i in range(8):
    a("v_lshlrev_b32 v%d, 16, v%d" % (CI + i, CI + i))
    a("v_xor_b32 v%d, v32, v%d" % (CI + i, CI + i))
a("s_lshl_b32 s29, s%d, 7" % sS2)
a("s_add_u32 s29, s29, %d" % WS_G)
a("v_lshlrev_b32 v19, 16, v10")
a("v_lshl_add_u32 v19, v9, 4, v19")
a("v_add_u32 v19, s29, v19")
a("v_lshlrev_b32 v20, 3, v9")
a("v_cvt_f32_u32 v20, v20")
a("s_lshl_b32 s32, s3, 2")
a("s_add_u32 s33, s32, 4")
a("s_min_u32 s33, s33, 15")
a("s_waitcnt lgkmcnt(0)")
C0, S0, C1, S1, CF = 136, 144, 152, 160, 22
TB, ZA, ZP, GA, GP = 168, 184, 200, 208, 224
a("L1_Btile:")
a("s_lshl_b32 s34, s32, 4")
a("s_add_u32 s34, s34, 1")
a("s_cmp_eq_u32 s32, 14")
a("s_cselect_b32 s34, -1, s34")
a("v_add_u32 v21, s34, v10")
a("v_cvt_f32_i32 v21, v21")
a("v_mul_f32 v21, %s, v21" % f32(1.0 / 448))
a("v_mul_f32 v32, v20, v21")
a("v_mul_f32 v24, %s, v21" % f32(32.0))
for j in range(1, 8): a("v_fmamk_f32 v%d, v21, %s, v32" % (32 + j, f32(float(j))))
a("v_cos_f32 v%d, v24" % CF)
for j in range(8): a("v_add_f32 v%d, v24, v%d" % (40 + j, 32 + j))
a("v_add_f32 v%d, v%d, v%d" % (CF, CF, CF))
for j in range(8): a("v_cos_f32 v%d, v%d" % (C0 + j, 32 + j))
a("v_mov_b32 v%d, v%d" % (CF + 1, CF))
for j in range(8): a("v_sin_f32 v%d, v%d" % (S0 + j, 32 + j))
def cvt_tab(ks):
    c, s = (C0, S0) if ks % 2 == 0 else (C1, S1)
    tb = TB + 8 * (ks & 1)
    return ["v_cvt_pk_bf16_f32 v%d, v%d, v%d" % (tb + i, c + 2 * i, c + 2 * i + 1) for i in range(4)] + \
           ["v_cvt_pk_bf16_f32 v%d, v%d, v%d" % (tb + 4 + i, s + 2 * i, s + 2 * i + 1) for i in range(4)]
def gen_tab(ks):
    if ks == 1:
        return ["v_cos_f32 v%d, v%d" % (C1 + j, 40 + j) for j in range(8)] + ["v_sin_f32 v%d, v%d" % (S1 + j, 40 + j) for j in range(8)]
    o, n = (C0, C1) if ks % 2 == 0 else (C1, C0)
    return ["v_pk_fma_f32 %s, %s, %s, %s neg_lo:[0,0,1] neg_hi:[0,0,1]" % (vr(o + j, 2), vr(CF, 2), vr(n + j, 2), vr(o + j, 2)) for j in range(0, 16, 2)]
def z_mfma(ks):
    tb = TB + 8 * (ks & 1)
    L = []
    for part in range(2):
        for rt in range(2):
            d = ZA + (part * 2 + rt) * 4
            c = vr(d) if ks else (vr(CI + 4 * rt) if part == 0 else "0")
            L.append("%s %s, %s, %s, %s" % (MF, vr(d), ar(((part * 2 + rt) * 7 + ks) * 4), vr(tb + 4 * part), c))
    return L
for l in cvt_tab(0): a(l)
for ks in range(7):
    nxt = gen_tab(ks + 1) + cvt_tab(ks + 1) if ks < 6 else []
    for l in interleave(z_mfma(ks), nxt, 0, 4): a(l)
a("s_lshr_b32 s34, s32, 1")
a("s_lshl_b32 s34, s34, 13")
a("s_and_b32 s35, s32, 1")
a("s_lshl_b32 s35, s35, 6")
a("s_add_u32 s34, s34, s35")
a("s_add_u32 s35, s34, %d" % (16 << 16))
a("s_add_u32 s32, s32, 1")
for i in range(8): a("v_cvt_pk_bf16_f32 v%d, v%d, v%d" % (ZP + i, ZA + 2 * i, ZA + 2 * i + 1))
for tt in range(2):
    a("%s %s, %s, %s, 0" % (MF, vr(GA + 8 * tt), vr(ZP), vr(TC + 4 * tt)))
    a("%s %s, %s, %s, 0" % (MF, vr(GA + 8 * tt + 4), vr(ZP), vr(TS + 4 * tt)))
for tt in range(2):
    a("%s %s, %s, %s, %s" % (MF, vr(GA + 8 * tt), vr(ZP + 4), vr(TN + 4 * tt), vr(GA + 8 * tt)))
    a("%s %s, %s, %s, %s" % (MF, vr(GA + 8 * tt + 4), vr(ZP + 4), vr(TC + 4 * tt), vr(GA + 8 * tt + 4)))
for tt in range(2):
    for i in range(4): a("v_cvt_pk_bf16_f32 v%d, v%d, v%d" % (GP + 4 * tt + i, GA + 8 * tt + 2 * i, GA + 8 * tt + 2 * i + 1))
    a("buffer_store_dwordx4 %s, v19, s[%d:%d], s%d offen" % (vr(GP + 4 * tt), SWS, SWS + 3, 34 + tt))
a("s_cmp_lt_u32 s32, s33")
a("s_cbranch_scc1 L1_Btile")
stamp()
stamp_end(0, SWS)
a("L1_end:")
a("s_endpgm")

kernel_header(a, "fa_p2_kernel")
stamp_begin()
a("s_cmp_ge_u32 s2, 256")
a("s_cbranch_scc1 L2_end")
a("s_load_dwordx2 s[4:5], s[0:1], 16")
a("s_load_dwordx2 s[6:7], s[0:1], 64")
a("s_load_dwordx2 s[10:11], s[0:1], 80")
a("v_lshrrev_b32 v2, 6, v0")
a("v_and_b32 v1, 63, v0")
a("v_readfirstlane_b32 s3, v2")
a("s_and_b32 s24, s2, 7")
a("s_lshr_b32 s25, s2, 3")
sRG, sCB = 26, 27
a("s_mul_i32 s28, s25, 37")
a("s_lshr_b32 s28, s28, 8")
a("s_mul_i32 s29, s28, 7")
a("s_sub_u32 s%d, s25, s29" % sCB)
a("s_cmp_ge_u32 s25, 28")
a("s_cselect_b32 s28, s%d, s28" % sCB)
a("s_cselect_b32 s%d, 7, s%d" % (sCB, sCB))
a("s_lshl_b32 s%d, s24, 2" % sRG)
a("s_add_u32 s%d, s%d, s28" % (sRG, sRG))
SWO, SOUT = 12, 16
GL = 57 * 1024
a("v_lshrrev_b32 v2, 3, v1")
a("v_and_b32 v3, 7, v1")
a("v_lshrrev_b32 v9, 4, v1")
a("v_and_b32 v10, 15, v1")
a("v_and_b32 v4, 4, v2")
a("v_xor_b32 v4, v4, v3")
a("v_lshlrev_b32 v4, 4, v4")
a("v_lshl_add_u32 v4, v2, 7, v4")
a("s_lshl_b32 s28, s%d, 3" % sRG)
a("s_add_u32 s28, s28, s%d" % sCB)
a("s_lshl_b32 s28, s28, 13")
a("s_lshl_b32 s29, s3, 11")
a("s_add_u32 s28, s28, s29")
a("s_add_u32 s28, s28, %d" % WS_G)
a("s_add_u32 s29, s29, %d" % GL)
a("v_and_b32 v5, 6, v2")
a("v_xor_b32 v5, v5, v3")
a("v_lshlrev_b32 v5, 4, v5")
a("v_mul_u32_u24 v6, 896, v2")
a("s_lshl_b32 s30, s%d, 7" % sCB)
a("s_mul_i32 s31, s3, 8*896")
a("s_add_u32 s30, s30, s31")
a("v_add3_u32 v5, v5, v6, s30")
a("s_lshl_b32 s31, s3, 10")
a("s_lshl_b32 s32, s%d, 2" % sRG)
a("s_add_u32 s32, s32, s3")
a("s_lshl_b32 s33, s32, 14")
a("v_lshl_add_u32 v6, v1, 4, s33")
a("s_waitcnt lgkmcnt(0)")
srd(a, SWO, 4, 448 * 896)
srd(a, SOUT, 6, 2048 * 1792)
srd(a, SWS, 10, WS_SIZE)
stamp()
a("s_mov_b32 m0, s29")
a("s_nop 0")
a("buffer_load_dwordx4 v4, s[%d:%d], s28 offen lds" % (SWS, SWS + 3))
a("buffer_load_dwordx4 v4, s[%d:%d], s28 offen offset:1024 lds" % (SWS, SWS + 3))
a("s_cmp_eq_u32 s%d, 7" % sCB)
a("s_cbranch_scc1 L2_noA")
OF = 64
for i in range(16):
    if i < 15:
        if i == 14:
            a("s_cmp_lg_u32 s3, 0")
            a("s_cbranch_scc1 L2_skipz")
        a("s_add_u32 m0, s31, %d" % (i * 4096))
        a("s_mov_b32 s34, %d" % (i * 32 * 896))
        a("buffer_load_dwordx4 v5, s[%d:%d], s34 offen lds" % (SWO, SWO + 3))
        if i == 14: a("L2_skipz:")
    a("s_mov_b32 s34, %d" % (i * 1024))
    a("buffer_load_dwordx4 %s, v6, s[%d:%d], s34 offen" % (vr(OF + 4 * i), SWS, SWS + 3))
a("L2_noA:")
stamp()
T2 = 128
a("s_lshl_b32 s34, s3, 4")
a("v_add_u32 v11, s34, v10")
a("v_cvt_f32_u32 v12, v11")
a("v_mul_f32 v12, %s, v12" % f32(1.0 / 64))
a("v_lshlrev_b32 v13, 2, v9")
a("v_cvt_f32_u32 v13, v13")
a("v_mul_f32 v13, v13, v12")
for h in range(2):
    for j in range(8):
        k = h * 8 + j
        a("v_fmamk_f32 v%d, v12, %s, v13" % (32 + j, f32(float(16 * (k >> 2) + (k & 3)))))
    for j in range(8): a("v_cos_f32 v%d, v%d" % (40 + j, 32 + j))
    for j in range(8): a("v_sin_f32 v%d, v%d" % (48 + j, 32 + j))
    for j in range(8): a("v_cvt_pk_bf16_f32 v%d, v%d, -v%d" % (T2 + h * 8 + j, 40 + j, 48 + j))
a("v_bfe_u32 v14, v1, 3, 1")
a("v_lshl_add_u32 v14, v9, 2, v14")
a("v_lshlrev_b32 v14, 7, v14")
a("v_and_b32 v15, 1, v9")
a("v_lshl_add_u32 v14, v15, 6, v14")
a("v_and_b32 v15, 3, v1")
a("v_lshl_add_u32 v14, v15, 4, v14")
a("v_bfe_u32 v16, v1, 2, 1")
a("v_lshl_add_u32 v14, v16, 3, v14")
a("v_add_u32 v14, %d, v14" % GL)
a("v_xor_b32 v17, 64, v14")
a("v_lshrrev_b32 v18, 2, v1")
a("v_bfe_u32 v19, v1, 3, 2")
a("v_lshlrev_b32 v19, 5, v19")
a("v_lshl_add_u32 v19, v18, 7, v19")
a("v_lshl_add_u32 v20, v15, 3, v19")
for c in range(1, 4): a("v_xor_b32 v%d, %d, v20" % (20 + c, 32 * c))
a("v_lshlrev_b32 v24, 5, v11")
a("v_add_u32 v24, s%d, v24" % sRG)
a("v_sub_u32 v25, 2048, v24")
a("v_and_b32 v25, 2047, v25")
a("v_mul_u32_u24 v24, 1792, v24")
a("v_mul_u32_u24 v25, 1792, v25")
a("s_lshl_b32 s34, s%d, 6" % sCB)
a("v_lshlrev_b32 v26, 3, v9")
a("v_add_u32 v26, s34, v26")
a("v_add_u32 v27, 896, v24")
a("v_add3_u32 v24, v27, v26, 2")
a("v_sub_u32 v25, v25, v26")
a("v_add_u32 v25, %d, v25" % (896 + 2 * (444 - 16)))
a("s_and_b32 s34, s32, 63")
a("s_lshl_b32 s34, s34, 5")
a("s_lshr_b32 s35, s32, 6")
a("s_add_u32 s34, s34, s35")
a("s_mul_i32 s34, s34, 1792")
a("s_lshl_b32 s35, s%d, 7" % sCB)
a("s_add_u32 s34, s34, s35")
a("v_mul_u32_u24 v28, 3584, v10")
a("v_and_b32 v29, 1, v9")
a("v_lshl_add_u32 v28, v29, 5, v28")
a("v_lshrrev_b32 v29, 1, v9")
a("v_lshl_add_u32 v28, v29, 4, v28")
a("v_add_u32 v28, s34, v28")
stamp()
a("s_waitcnt vmcnt(0)")
a("s_barrier")
stamp()
GF, YA, YP = 144, 176, 184
for et in range(2):
    for ks in range(4):
        for r in range(2):
            a("ds_read_b64_tr_b16 %s, v%d offset:%d" % (vr(GF + (et * 4 + ks) * 4 + 2 * r, 2), 17 if et else 14, ks * 2048 + r * 256))
a("s_waitcnt lgkmcnt(0)")
for ks in range(4):
    for et in range(2):
        a("%s %s, %s, %s, %s" % (MF, vr(YA + 4 * et), vr(GF + (et * 4 + ks) * 4), vr(T2 + 4 * ks), vr(YA + 4 * et) if ks else "0"))
a("s_cmp_eq_u32 s%d, 7" % sCB)
a("s_cbranch_scc1 L2_e0")
WF2, OA2, OP2 = 192, 32, 48
def rd2(h):
    return ["ds_read_b64_tr_b16 %s, v%d offset:%d" % (vr(WF2 + (h & 1) * 16 + c * 4 + 2 * r, 2), 20 + (c ^ (2 * (h & 1))), h * 28 * 128 + r * 2048)
            for c in range(4) for r in range(2)]
for l in rd2(0): a(l)
for et in range(2):
    y = YA + 4 * et
    a("v_cvt_pk_bf16_f32 v%d, v%d, v%d" % (YP + 4 * et, y, y + 1))
    a("v_cvt_pk_bf16_f32 v%d, v%d, v%d" % (YP + 4 * et + 1, y + 2, y + 3))
    a("v_cvt_pk_bf16_f32 v%d, v%d, v%d" % (YP + 4 * et + 2, y + 3, y + 2))
    a("v_cvt_pk_bf16_f32 v%d, v%d, v%d" % (YP + 4 * et + 3, y + 1, y))
    a("buffer_store_dwordx2 %s, v24, s[%d:%d], 0 offen offset:%d" % (vr(YP + 4 * et, 2), SOUT, SOUT + 3, 32 * et))
    a("buffer_store_dwordx2 %s, v25, s[%d:%d], 0 offen offset:%d" % (vr(YP + 4 * et + 2, 2), SOUT, SOUT + 3, 32 * (1 - et)))
for h in range(16):
    a("s_waitcnt lgkmcnt(0)")
    mf = ["%s %s, %s, %s, %s" % (MF, vr(OA2 + 4 * c), vr(WF2 + (h & 1) * 16 + c * 4), vr(OF + 4 * h), vr(OA2 + 4 * c) if h else "0") for c in range(4)]
    rd = rd2(h + 1) if h < 15 else []
    for l in rd[:4]: a(l)
    for l in interleave(mf, rd[4:], 0, 2): a(l)
for i in range(8): a("v_cvt_pk_bf16_f32 v%d, v%d, v%d" % (OP2 + i, OA2 + 2 * i, OA2 + 2 * i + 1))
for pr in range(2):
    a("v_permlane16_swap_b32 v%d, v%d" % (OP2 + 4 * pr, OP2 + 4 * pr + 2))
    a("v_permlane16_swap_b32 v%d, v%d" % (OP2 + 4 * pr + 1, OP2 + 4 * pr + 3))
for pr in range(2):
    a("buffer_store_dwordx4 %s, v28, s[%d:%d], 0 offen offset:%d" % (vr(OP2 + 4 * pr), SOUT, SOUT + 3, 64 * pr))
stamp()
stamp_end(1, SWS)
a("s_endpgm")
a("L2_e0:")
a("v_cvt_pk_bf16_f32 v%d, v%d, v%d" % (YP, YA + 1, YA + 1))
a("s_mov_b64 exec, 0xffff")
a("buffer_store_short v%d, v27, s[%d:%d], 0 offen" % (YP, SOUT, SOUT + 3))
a("L2_end:")
a("s_endpgm")

a.raw('.section .rodata,"a"')
kernel_desc(a, "fa_p1_kernel", 256 + 112, 102, 256)
kernel_desc(a, "fa_p2_kernel", 224, 102, 224)
open(OUT, "w").write(a.text(fix=True, verbose="v" in sys.argv))
print("nops inserted:", a.nops)
```

```python
import sys, re
s = open(sys.argv[1]).read(); st = sys.argv[3].split(":")
N = "concat_heads__sliding_local_dilated__spectral_fnet__prompt_kernel"
s = s.replace("; @launch grid", "; @launch kernel=%s grid" % N, 1)
if st[0] == "list":
    open(sys.argv[2], 'w').write(s); sys.exit()
s = s.replace('.amdgcn_target', "; @launch kernel=probe_kernel grid=(1,1,1) block=(64,1,1) lds=0\n.amdgcn_target", 1)
op = {"max": "v_max_u32", "min": "v_min_u32", "none": None}[st[0]]
col = int(st[1]) if op else 0
jlo, jhi = (int(st[2]), int(st[3])) if len(st) > 2 else (0, 32)
b = [".text", ".globl probe_kernel", ".p2align 8", ".type probe_kernel,@function", "probe_kernel:",
     "s_cmp_lg_u32 s2, 0", "s_cbranch_scc1 L_pe",
     "s_load_dwordx2 s[4:5], s[0:1], 80", "s_mov_b32 s6, 0x1000000", "s_mov_b32 s7, 0x20000", "v_lshlrev_b32 v1, 6, v0", "s_waitcnt lgkmcnt(0)",
     "s_mov_b32 s8, 0x800000", "buffer_load_dword v2, off, s[4:7], s8", "s_waitcnt vmcnt(0)", "v_subrev_u32 v2, 0x10000, v2",
     "v_mov_b32 v3, -1", "v_mov_b32 v4, %d" % (0 if st[0] != "min" else -1)]
for i in range(16):
    b += ["s_mov_b32 s8, %d" % (0x800000 + i * 4096), "buffer_load_dword v5, v1, s[4:7], s8 offen", "buffer_load_dword v6, v1, s[4:7], s8 offen offset:%d" % (4 * col),
          "s_waitcnt vmcnt(0)", "v_sub_u32 v5, v5, v2", "v_sub_u32 v6, v6, v2", "v_min_u32 v3, v3, v5"]
    if op:
        lo, hi = jlo <= 2 * i < jhi, jlo <= 2 * i + 1 < jhi
        if lo or hi: b += ["s_mov_b32 exec_lo, %d" % (-1 if lo else 0), "s_mov_b32 exec_hi, %d" % (-1 if hi else 0), "%s v4, v4, v6" % op, "s_mov_b64 exec, -1"]
b += ["s_mov_b32 s10, -1", "s_mov_b32 s11, %d" % (0 if st[0] != "min" else -1), "s_mov_b32 s9, 0", "L_pr:", "s_nop 4", "v_readlane_b32 s12, v3, s9", "v_readlane_b32 s13, v4, s9", "s_nop 1",
      "s_min_u32 s10, s10, s12", "s_%s_u32 s11, s11, s13" % ("min" if st[0] == "min" else "max"), "s_add_u32 s9, s9, 1", "s_cmp_lt_u32 s9, 64", "s_cbranch_scc1 L_pr",
      "v_readfirstlane_b32 s12, v2", "s_sub_u32 s11, s11, s10" if op else "s_mov_b32 s11, 0", "s_min_u32 s11, s11, 3000", "s_lshl_b32 s11, s11, 2", "s_add_u32 s11, s11, 3000",
      "s_add_u32 s10, s10, s12",
      "L_ps:", "s_memrealtime s[14:15]", "s_waitcnt lgkmcnt(0)", "s_sub_u32 s14, s14, s10", "s_cmp_lt_u32 s14, s11", "s_cbranch_scc1 L_ps", "L_pe:", "s_endpgm"]
s = s.replace('.section .rodata,"a"\n', "\n".join(("    " + x if not x.endswith(":") and not x.startswith(".") else x) for x in b) + '\n.section .rodata,"a"\n')
s += """.p2align 6
.amdhsa_kernel probe_kernel
  .amdhsa_next_free_vgpr 8
  .amdhsa_next_free_sgpr 16
  .amdhsa_accum_offset 8
  .amdhsa_group_segment_fixed_size 0
  .amdhsa_kernarg_size 88
  .amdhsa_user_sgpr_count 2
  .amdhsa_user_sgpr_kernarg_segment_ptr 1
  .amdhsa_system_sgpr_workgroup_id_x 1
.end_amdhsa_kernel
"""
open(sys.argv[2], 'w').write(s)
```

```python
import sys, re
s = open(sys.argv[1]).read(); st = sys.argv[3].split(":")
N = "concat_heads__sliding_local_dilated__spectral_fnet__prompt_kernel"
s = s.replace("; @launch grid", "; @launch kernel=%s grid" % N, 1)
if st[0] == "list":
    open(sys.argv[2], 'w').write(s); sys.exit()
s = s.replace('.amdgcn_target', "; @launch kernel=probe_kernel grid=(1,1,1) block=(64,1,1) lds=0\n.amdgcn_target", 1)
DIFF = None
if st[0] == "cyc":
    DIFF = int(st[2]); st = ["max", st[1]] + st[3:]
op = {"max": "v_max_u32", "min": "v_min_u32", "none": None}[st[0]]
col = int(st[1]) if op else 0
jlo, jhi = (int(st[2]), int(st[3])) if len(st) > 2 else (0, 32)
XM = (0xF << (4 * int(st[4]))) if len(st) > 4 else 0xFFFFFFFF
b = [".text", ".globl probe_kernel", ".p2align 8", ".type probe_kernel,@function", "probe_kernel:",
     "s_cmp_lg_u32 s2, 0", "s_cbranch_scc1 L_pe",
     "s_load_dwordx2 s[4:5], s[0:1], 80", "s_mov_b32 s6, 0x1000000", "s_mov_b32 s7, 0x20000", "v_lshlrev_b32 v1, 6, v0", "s_waitcnt lgkmcnt(0)",
     "s_mov_b32 s8, 0x800000", "buffer_load_dword v2, off, s[4:7], s8", "s_waitcnt vmcnt(0)", "v_subrev_u32 v2, 0x10000, v2",
     "v_mov_b32 v3, -1", "v_mov_b32 v4, %d" % (0 if st[0] != "min" else -1)]
for i in range(16):
    b += ["s_mov_b32 s8, %d" % (0x800000 + i * 4096), "buffer_load_dword v5, v1, s[4:7], s8 offen", "buffer_load_dword v6, v1, s[4:7], s8 offen offset:%d" % (4 * col),
          "buffer_load_dword v7, v1, s[4:7], s8 offen offset:%d" % (4 * (DIFF or 0)),
          "s_waitcnt vmcnt(0)", "v_sub_u32 v5, v5, v2", "v_sub_u32 v6, v6, v%d" % (2 if DIFF is None else 7), "v_min_u32 v3, v3, v5"]
    if op:
        lo, hi = jlo <= 2 * i < jhi, jlo <= 2 * i + 1 < jhi
        if lo or hi: b += ["s_mov_b32 exec_lo, 0x%x" % (XM if lo else 0), "s_mov_b32 exec_hi, 0x%x" % (XM if hi else 0), "%s v4, v4, v6" % op, "s_mov_b64 exec, -1"]
b += ["s_mov_b32 s10, -1", "s_mov_b32 s11, %d" % (0 if st[0] != "min" else -1), "s_mov_b32 s9, 0", "L_pr:", "s_nop 4", "v_readlane_b32 s12, v3, s9", "v_readlane_b32 s13, v4, s9", "s_nop 1",
      "s_min_u32 s10, s10, s12", "s_%s_u32 s11, s11, s13" % ("min" if st[0] == "min" else "max"), "s_add_u32 s9, s9, 1", "s_cmp_lt_u32 s9, 64", "s_cbranch_scc1 L_pr",
      "v_readfirstlane_b32 s12, v2", "s_lshr_b32 s11, s11, 4" if DIFF is not None else "s_sub_u32 s11, s11, s10" if op else "s_mov_b32 s11, 0", "s_min_u32 s11, s11, 3000", "s_lshl_b32 s11, s11, 2", "s_add_u32 s11, s11, 3000",
      "s_add_u32 s10, s10, s12",
      "L_ps:", "s_memrealtime s[14:15]", "s_waitcnt lgkmcnt(0)", "s_sub_u32 s14, s14, s10", "s_cmp_lt_u32 s14, s11", "s_cbranch_scc1 L_ps", "L_pe:", "s_endpgm"]
s = s.replace('.section .rodata,"a"\n', "\n".join(("    " + x if not x.endswith(":") and not x.startswith(".") else x) for x in b) + '\n.section .rodata,"a"\n')
s += """.p2align 6
.amdhsa_kernel probe_kernel
  .amdhsa_next_free_vgpr 8
  .amdhsa_next_free_sgpr 16
  .amdhsa_accum_offset 8
  .amdhsa_group_segment_fixed_size 0
  .amdhsa_kernarg_size 88
  .amdhsa_user_sgpr_count 2
  .amdhsa_user_sgpr_kernarg_segment_ptr 1
  .amdhsa_system_sgpr_workgroup_id_x 1
.end_amdhsa_kernel
"""
open(sys.argv[2], 'w').write(s)
```
